```python
import torch

def _softmax(x, axis=-1):
    return torch.softmax(x, dim=axis)
def _gelu(x):
    return torch.nn.functional.gelu(x, approximate="tanh")
def _silu(x):
    return torch.nn.functional.silu(x)
def _sigmoid(x):
    return torch.sigmoid(x)
def _layernorm(x, axis=-1, eps=1e-5):
    m = x.mean(dim=axis, keepdim=True)
    v = x.var(dim=axis, keepdim=True, unbiased=False)
    return (x - m) / torch.sqrt(v + eps)
def _scatter_add(tgt, idx, src, axis=0):
    return tgt.clone().index_add_(axis, idx, src)
def _segment_sum(src, seg, n):
    out = torch.zeros((n,) + src.shape[1:], dtype=src.dtype)
    return out.index_add_(0, seg, src)
def _pad(x, pw):
    flat = tuple(v for pair in reversed(pw) for v in pair)
    return torch.nn.functional.pad(x, flat)

kernel_name = 'sequential_preLN__linear_kernel_hedgehog__mixer_token_mlp__prompt'

def setup_inputs():

    _w = (lambda a: (lambda t: t.to(torch.bfloat16) if t.is_floating_point() else t)(torch.as_tensor(a)))
    def _A_setup():
        B, S, D, H = 1, 2048, 576, 32
        Dh = D // H
        return {
            "x": _w((lambda *s: torch.randn(*s, dtype=torch.bfloat16) * 0.05)(B, S, D)),
            "wqkv": _w((lambda *s: torch.randn(*s, dtype=torch.bfloat16) * 0.2)(D, 3 * D)),
            "w_phi": _w((lambda *s: torch.randn(*s, dtype=torch.bfloat16) * 0.2)(H, Dh, Dh) * (Dh ** -0.5)),
            "wo": _w((lambda *s: torch.randn(*s, dtype=torch.bfloat16) * 0.05)(D, D)),
        }
    _A_in = _A_setup()

    def _B_setup():
        B, S, D, F = 1, 2048, 576, 4608
        return {
            "x": _w((lambda *s: torch.randn(*s, dtype=torch.bfloat16) * 0.05)(B, S, D)),
            "w1": _w((lambda *s: torch.randn(*s, dtype=torch.bfloat16) * 0.4)(S, F) * (S ** -0.5)),
            "b1": _w((lambda *s: torch.randn(*s, dtype=torch.bfloat16) * 12.8)(F) * 0.02),
            "w2": _w((lambda *s: torch.randn(*s, dtype=torch.bfloat16) * 0.4)(F, S) * (F ** -0.5)),
            "b2": _w((lambda *s: torch.randn(*s, dtype=torch.bfloat16) * 6.4)(S) * 0.02),
        }
    _B_in = _B_setup()

    return {
        "A_x": _A_in["x"],
        "A_wqkv": _A_in["wqkv"],
        "A_w_phi": _A_in["w_phi"],
        "A_wo": _A_in["wo"],
        "B_x": _B_in["x"],
        "B_w1": _B_in["w1"],
        "B_b1": _B_in["b1"],
        "B_w2": _B_in["w2"],
        "B_b2": _B_in["b2"],
    }

def reference(A_x, A_wqkv, A_w_phi, A_wo, B_x, B_w1, B_b1, B_w2, B_b2):
    def _A_ref(x, wqkv, w_phi, wo):
        B, S, D = x.shape
        H = 32; Dh = D // H
        qkv = (lambda x, *d: x.permute(*d))((x @ wqkv).reshape(B, S, 3, H, Dh), 2, 0, 3, 1, 4)
        q, k, v = qkv[0], qkv[1], qkv[2]
        pq = torch.einsum("bhsd,hdf->bhsf", q, w_phi)
        pk = torch.einsum("bhsd,hdf->bhsf", k, w_phi)
        phi_q = torch.concatenate([_softmax(pq, axis=-1), _softmax(-pq, axis=-1)], axis=-1)
        phi_k = torch.concatenate([_softmax(pk, axis=-1), _softmax(-pk, axis=-1)], axis=-1)
        kv = torch.einsum("bhsf,bhsd->bhfd", phi_k, v)
        z  = torch.einsum("bhsf->bhf", phi_k)
        num = torch.einsum("bhqf,bhfd->bhqd", phi_q, kv)
        den = torch.einsum("bhqf,bhf->bhq", phi_q, z)[..., None] + 1e-6
        o = num / den
        return (lambda x, *d: x.permute(*d))(o, 0, 2, 1, 3).reshape(B, S, D) @ wo

    def _B_ref(x, w1, b1, w2, b2):
        B, S, D = x.shape
        h = _layernorm(x, axis=-1)
        u = torch.einsum("bsd,sf->bdf", h, w1) + b1
        u = _gelu(u)
        y = torch.einsum("bdf,fs->bds", u, w2) + b2
        return (lambda x, *d: x.permute(*d))(y, 0, 2, 1)

    x = A_x
    h = x + _A_ref(_layernorm(x, axis=-1), A_wqkv, A_w_phi, A_wo)
    h2 = h + _B_ref(_layernorm(h, axis=-1), B_w1, B_b1, B_w2, B_b2)
    return h2
```

```python
import re

TRANS = ('v_exp_f32', 'v_log_f32', 'v_rcp_f32', 'v_rsq_f32', 'v_sqrt_f32', 'v_sin_f32', 'v_cos_f32', 'v_rcp_iflag_f32')

_reg_re = re.compile(r'^(-|\|)?(abs\()?([vsa])(\d+)\)?\|?$')
_rng_re = re.compile(r'^(-|\|)?([vsa])\[(\d+):(\d+)\]\|?$')


def regs_of(tok):
    tok = tok.strip()
    if tok == 'vcc':
        return {('s', 106), ('s', 107)}
    if tok == 'vcc_lo':
        return {('s', 106)}
    if tok == 'vcc_hi':
        return {('s', 107)}
    if tok == 'exec':
        return {('s', 126), ('s', 127)}
    if tok == 'm0':
        return {('s', 124)}
    m = _reg_re.match(tok)
    if m:
        return {(m.group(3), int(m.group(4)))}
    m = _rng_re.match(tok)
    if m:
        return {(m.group(2), i) for i in range(int(m.group(3)), int(m.group(4)) + 1)}
    return set()


def split_ops(s):
    out, depth, cur = [], 0, ''
    for ch in s:
        if ch in '[(':
            depth += 1
        elif ch in '])':
            depth -= 1
        if ch == ',' and depth == 0:
            out.append(cur.strip())
            cur = ''
        else:
            cur += ch
    if cur.strip():
        out.append(cur.strip())
    return out


class Ins:
    __slots__ = ('op', 'kind', 'w', 'r', 'states', 'passes', 'srcc', 'ab', 'dpp', 'lds_dma', 'wide_store_data', 'text', 'sread_const')


def classify(line):
    t = line.split(';')[0].strip()
    parts = t.split(None, 1)
    op = parts[0]
    rest = parts[1] if len(parts) > 1 else ''
    ops = split_ops(rest)
    mods = []
    if ops:
        last = ops[-1].split()
        ops[-1] = last[0]
        mods = last[1:]
    I = Ins()
    I.op, I.text = op, line
    I.w, I.r = set(), set()
    I.states, I.passes, I.srcc, I.ab = 1, 0, set(), set()
    I.dpp = any(m.startswith(('quad_perm', 'row_', 'wave_', 'row_bcast')) for m in mods) or op.endswith('_dpp')
    I.lds_dma = ('lds' in mods) or op.startswith('global_load_lds')
    I.wide_store_data = set()
    base = op.replace('_e32', '').replace('_e64', '').replace('_dpp', '').replace('_sdwa', '')
    if op == 's_nop':
        I.kind = 'nop'
        I.states = int(ops[0], 0) + 1
    elif op.startswith('v_mfma'):
        I.kind = 'mfma'
        I.w = regs_of(ops[0])
        I.ab = regs_of(ops[1]) | regs_of(ops[2])
        I.srcc = regs_of(ops[3])
        I.r = I.ab | I.srcc
        I.passes = 8 if '32x32x16' in op else 4
    elif op.startswith('v_'):
        I.kind = 'valu'
        if base.startswith('v_cmp'):
            I.w = regs_of(ops[0])
            for o in ops[1:]:
                I.r |= regs_of(o)
        elif base.startswith('v_permlane') and 'swap' in base:
            I.w = regs_of(ops[0]) | regs_of(ops[1])
            I.r = set(I.w)
        elif base in ('v_add_co_u32', 'v_sub_co_u32', 'v_addc_co_u32', 'v_subb_co_u32', 'v_mad_u64_u32', 'v_div_scale_f32'):
            I.w = regs_of(ops[0]) | regs_of(ops[1])
            for o in ops[2:]:
                I.r |= regs_of(o)
        else:
            I.w = regs_of(ops[0])
            for o in ops[1:]:
                I.r |= regs_of(o)
            if base.startswith(('v_fmac', 'v_dot2c', 'v_pk_fmac', 'v_writelane')) or I.dpp:
                I.r |= I.w
            if base == 'v_cndmask_b32' and len(ops) == 3:
                I.r |= regs_of('vcc')
    elif op.startswith(('buffer_', 'global_', 'flat_', 'scratch_')):
        I.kind = 'vmem'
        is_store = 'store' in op or ('atomic' in op)
        if I.lds_dma and op.startswith('buffer_'):
            for o in ops:
                I.r |= regs_of(o)
            I.r |= regs_of('m0')
        elif I.lds_dma:
            for o in ops:
                I.r |= regs_of(o)
            I.r |= regs_of('m0')
        elif is_store:
            for o in ops:
                I.r |= regs_of(o)
            if 'atomic' in op and 'sc0' in mods:
                I.w = regs_of(ops[0])
            if op.endswith(('x3', 'x4')):
                I.wide_store_data = regs_of(ops[0]) if op.startswith('buffer_') else regs_of(ops[1])
        else:
            I.w = regs_of(ops[0])
            for o in ops[1:]:
                I.r |= regs_of(o)
            if 'd16' in op:
                I.r |= I.w
    elif op.startswith('ds_'):
        I.kind = 'ds'
        if op.startswith(('ds_read', 'ds_bpermute', 'ds_permute', 'ds_swizzle')) or '_rtn' in op:
            I.w = regs_of(ops[0])
            for o in ops[1:]:
                I.r |= regs_of(o)
        else:
            for o in ops:
                I.r |= regs_of(o)
    elif op.startswith('s_'):
        I.kind = 'salu'
        if op.startswith(('s_cmp', 's_cbranch', 's_branch', 's_waitcnt', 's_barrier', 's_endpgm', 's_setprio', 's_sleep', 's_bitcmp')):
            for o in ops:
                I.r |= regs_of(o)
        else:
            if ops:
                I.w = regs_of(ops[0])
            for o in ops[1:]:
                I.r |= regs_of(o)
            if 'saveexec' in op:
                I.w |= regs_of('exec')
    else:
        raise ValueError('unknown instr ' + line)
    return I


def need(prev, cur):
    n = 0
    pw_v = {x for x in prev.w if x[0] in 'va'}
    pw_s = {x for x in prev.w if x[0] == 's'}
    if prev.kind == 'valu':
        if cur.kind == 'mfma' and pw_v & cur.r:
            n = max(n, 2)
        if cur.kind == 'valu':
            b = cur.op
            if b.startswith(('v_readfirstlane', 'v_readlane')) and pw_v & cur.r:
                n = max(n, 1)
            if b.startswith('v_permlane') and pw_v & cur.r:
                n = max(n, 2)
            if cur.dpp and pw_v & cur.r:
                n = max(n, 2)
            if prev.op.replace('_e32', '').replace('_e64', '') in TRANS and pw_v & cur.r:
                n = max(n, 1)
            if pw_s & cur.r:
                n = max(n, 4 if b.startswith(('v_readlane', 'v_writelane', 'v_div_fmas')) else 2)
            if ('s', 126) in pw_s:
                n = max(n, 5 if cur.dpp else 4)
            if ('sdwa' in prev.text) and pw_v & (cur.r | cur.w):
                n = max(n, 1)
        if prev.op.startswith('v_dot') and pw_v & (cur.r | cur.w) and cur.kind in ('valu', 'mfma', 'vmem', 'ds'):
            if not (cur.op == prev.op and cur.w == prev.w):
                n = max(n, 3)
        if cur.kind == 'valu':
            pass
        if cur.kind == 'mfma' and ('s', 126) in pw_s:
            n = max(n, 4)
        if cur.kind == 'vmem' and pw_s & cur.r:
            n = max(n, 5)
        if cur.kind == 'salu' and pw_s & cur.r:
            n = max(n, 1)
    if prev.kind == 'mfma':
        big = {4: 8, 8: 12}[prev.passes]
        if cur.kind == 'mfma':
            if prev.w & cur.ab:
                n = max(n, big)
            if prev.w & cur.srcc and not (prev.w == cur.srcc and prev.passes == cur.passes):
                n = max(n, big - 2)
            if prev.w & cur.w and not (prev.w == cur.srcc):
                n = max(n, big)
        elif cur.kind in ('valu', 'vmem', 'ds'):
            if prev.w & (cur.r | cur.w):
                n = max(n, big)
            if cur.kind == 'valu' and prev.srcc & cur.w:
                n = max(n, {4: 3, 8: 7}[prev.passes])
    if prev.kind == 'salu' and ('s', 124) in prev.w:
        if cur.lds_dma or cur.op.startswith(('s_movrel', 's_sendmsg')) or 'addtid' in cur.op:
            n = max(n, 1)
    if prev.wide_store_data and (prev.wide_store_data & cur.w):
        n = max(n, 2 if cur.kind == 'valu' else 1)
    return n


class Asm:
    def __init__(self):
        self.lines = []
        self.hist = []
        self.nlabel = 0

    def raw(self, s):
        self.lines.append(s)

    def c(self, s):
        self.lines.append('    ; ' + s)

    def label(self, name):
        self.lines.append(name + ':')

    def newlabel(self, p='L'):
        self.nlabel += 1
        return '%s_%d' % (p, self.nlabel)

    def flush_hazards(self, n=12):
        self.lines.append('    s_nop %d' % (n - 1))
        self.hist.append(classify('s_nop %d' % (n - 1)))

    def __call__(self, line):
        cur = classify(line)
        dist = 0
        pad = 0
        for prev in reversed(self.hist[-24:]):
            n = need(prev, cur)
            if n > dist:
                pad = max(pad, n - dist)
            dist += prev.states
            if dist >= 20:
                break
        while pad > 0:
            k = min(pad, 16)
            self.lines.append('    s_nop %d' % (k - 1))
            self.hist.append(classify('s_nop %d' % (k - 1)))
            pad -= k
        self.lines.append('    ' + line)
        self.hist.append(cur)
        if len(self.hist) > 64:
            self.hist = self.hist[-32:]

    def text(self):
        return '\n'.join(self.lines) + '\n'


def v(i, n=1):
    return 'v%d' % i if n == 1 else 'v[%d:%d]' % (i, i + n - 1)


def s(i, n=1):
    return 's%d' % i if n == 1 else 's[%d:%d]' % (i, i + n - 1)


class Alloc:
    def __init__(self, start=0, limit=256):
        self.n = start
        self.limit = limit

    def get(self, n=1, align=1):
        self.n = (self.n + align - 1) // align * align
        r = self.n
        self.n += n
        assert self.n <= self.limit, 'out of registers'
        return r
```

```python
S, D, H, DH, F = 2048, 576, 32, 18, 4608
NAME = 'sequential_preLN__linear_kernel_hedgehog__mixer_token_mlp__prompt'
KA_X, KA_WQKV, KA_WPHI, KA_WO, KA_BX, KA_W1, KA_B1, KA_W2, KA_B2, KA_OUT, KA_DBG, KA_WS = [8 * i for i in range(12)]
HN_OFF, HN_SIZE = 0x000000, 64 * 36 * 1024
U_OFF, U_SIZE = 0x280000, 144 * 36 * 1024
H_OFF, H_SIZE = 0x800000, S * D * 2
PQ_OFF, PQ_SIZE = 0xA80000, 128 * 4 * 9 * 1024
KV_OFF = 0x1000000
KV_HEAD = 2816
KV_T0R, KV_T1 = 2048, 2304
KV_SIZE = 32 * KV_HEAD
ST_OFF, ST_SIZE = 0x1080000, 64 * 4 * 256
FL_OFF, FL_SIZE = 0x10C0000, 256 * 128
XC_OFF = 0x1100000
SY_OFF, SY_SIZE = 0x10E0000, 3 * 64 * 128
```
